```python
import torch

def _softmax(x, axis=-1):
    return torch.softmax(x, dim=axis)

def _gelu(x):
    return torch.nn.functional.gelu(x, approximate='tanh')

def _silu(x):
    return torch.nn.functional.silu(x)

def _sigmoid(x):
    return torch.sigmoid(x)

def _layernorm(x, axis=-1, eps=1e-05):
    m = x.mean(dim=axis, keepdim=True)
    v = x.var(dim=axis, keepdim=True, unbiased=False)
    return (x - m) / torch.sqrt(v + eps)

def _scatter_add(tgt, idx, src, axis=0):
    return tgt.clone().index_add_(axis, idx, src)

def _segment_sum(src, seg, n):
    out = torch.zeros((n,) + src.shape[1:], dtype=src.dtype)
    return out.index_add_(0, seg, src)

def _pad(x, pw):
    flat = tuple((v for pair in reversed(pw) for v in pair))
    return torch.nn.functional.pad(x, flat)
kernel_name = 'recurrent_scan__memory_aug_recurrent_mem_tr__mixer_channel_mlp__prompt'

def setup_inputs():

    _w = lambda a: (lambda t: t.to(torch.bfloat16) if t.is_floating_point() else t)(torch.as_tensor(a))

    def _A_setup():
        B, S, Dm = (1, 2048, 512)
        H, Dh = (32, 128)
        M, seg = (8, 32)
        seg = min(seg, S)
        S = S // seg * seg
        return {'x': _w((lambda *s: torch.randn(*s, dtype=torch.bfloat16) * 0.05)(B, S, Dm)), 'mem0': _w((lambda *s: torch.randn(*s, dtype=torch.bfloat16) * 0.8)(B, M, Dm)), 'Wq': _w((lambda *s: torch.randn(*s, dtype=torch.bfloat16) * 0.8)(Dm, H, Dh) * Dm ** (-0.5)), 'Wk': _w((lambda *s: torch.randn(*s, dtype=torch.bfloat16) * 0.8)(Dm, H, Dh) * Dm ** (-0.5)), 'Wv': _w((lambda *s: torch.randn(*s, dtype=torch.bfloat16) * 0.8)(Dm, H, Dh) * Dm ** (-0.5)), 'Wo': _w((lambda *s: torch.randn(*s, dtype=torch.bfloat16) * 0.8)(H, Dh, Dm) * (H * Dh) ** (-0.5)), 'seg_len': seg}
    _A_in = _A_setup()

    def _B_setup():
        B, S, D, F = (1, 2048, 512, 1376)
        return {'x': _w((lambda *s: torch.randn(*s, dtype=torch.bfloat16) * 0.05)(B, S, D)), 'w1': _w((lambda *s: torch.randn(*s, dtype=torch.bfloat16) * 0.8)(D, F) * D ** (-0.5)), 'b1': _w((lambda *s: torch.randn(*s, dtype=torch.bfloat16) * 0.4)(F)), 'w2': _w((lambda *s: torch.randn(*s, dtype=torch.bfloat16) * 0.2)(F, D) * F ** (-0.5)), 'b2': _w((lambda *s: torch.randn(*s, dtype=torch.bfloat16) * 0.2)(D))}
    _B_in = _B_setup()
    return {'A_x': _A_in['x'], 'A_mem0': _A_in['mem0'], 'A_Wq': _A_in['Wq'], 'A_Wk': _A_in['Wk'], 'A_Wv': _A_in['Wv'], 'A_Wo': _A_in['Wo'], 'A_seg_len': _A_in['seg_len'], 'B_x': _B_in['x'], 'B_w1': _B_in['w1'], 'B_b1': _B_in['b1'], 'B_w2': _B_in['w2'], 'B_b2': _B_in['b2']}

def reference(A_x, A_mem0, A_Wq, A_Wk, A_Wv, A_Wo, A_seg_len, B_x, B_w1, B_b1, B_w2, B_b2):

    def _A_ref(x, mem0, Wq, Wk, Wv, Wo, seg_len):
        B, S, Dm = x.shape
        H, Dh = (Wq.shape[1], Wq.shape[2])
        M = mem0.shape[1]
        scale = Dh ** (-0.5)
        n_seg = S // seg_len
        L = M + seg_len
        idx = torch.arange(L)
        mask = (idx[:, None] < M) | (idx[:, None] >= idx[None, :])
        mem = mem0
        outs = []
        for s in range(n_seg):
            xs = x[:, s * seg_len:(s + 1) * seg_len, :].clone()
            h = torch.concatenate([mem, xs], axis=1)
            q = torch.einsum('btd,dhe->bhte', h, Wq)
            k = torch.einsum('btd,dhe->bhte', h, Wk)
            v = torch.einsum('btd,dhe->bhte', h, Wv)
            scores = torch.einsum('bhqe,bhke->bhqk', q, k) * scale
            scores = torch.where(mask[None, None], scores, -1000000000.0)
            p = _softmax(scores, axis=-1)
            o = torch.einsum('bhqk,bhke->bhqe', p, v)
            o = torch.einsum('bhte,hed->btd', o, Wo)
            mem = o[:, :M, :].clone()
            outs.append(o[:, M:, :])
        return torch.concatenate(outs, axis=1)

    def _B_ref(x, w1, b1, w2, b2):
        y = _layernorm(x, axis=-1)
        h = _gelu(torch.einsum('bsd,df->bsf', y, w1) + b1)
        return torch.einsum('bsf,fd->bsd', h, w2) + b2
    x = A_x
    xn = _layernorm(x, axis=-1)
    s = _A_ref(xn, A_mem0, A_Wq, A_Wk, A_Wv, A_Wo, A_seg_len)
    g = _silu(_B_ref(xn, B_w1, B_b1, B_w2, B_b2))
    return x + s * g
```

```python
import sys
NAME="recurrent_scan__memory_aug_recurrent_mem_tr__mixer_channel_mlp__prompt"
XN=0;Y=0x200000;WQKVF=0x400000;WOF=0x1000000;W1F=0x1400000;W2F=0x1600000
Q=0x2000000;KB=0x3000000;VT=0x4000000;OB=0x5000000;HB=0x6000000;GB=0x6800000
KM=0x6A00000;VMT=0x6E00000;MB1=0x7200000;MB2=0x7300000
WSZ=0x10000000
out=[]
def E(s): out.append(s)
kernels=[]
def kstart(n):
    E(f".p2align 8\n.globl {n}\n.type {n},@function\n{n}:")
def kend(n,vg=256,acc=256):
    E("s_endpgm")
    kernels.append((n,vg,acc))
def srd(d,slot,size):
    E(f"s_load_dwordx2 s[{d}:{d+1}], s[0:1], {slot*8}\ns_waitcnt lgkmcnt(0)\ns_mov_b32 s{d+2}, {size}\ns_mov_b32 s{d+3}, 0x00020000")
def lit(s,v): E(f"s_mov_b32 s{s}, {v}")
def rnd(v): E(f"v_cvt_pk_bf16_f32 v{v}, v{v}, v{v}\nv_lshlrev_b32 v{v}, 16, v{v}")
def unpk(dst,src): E(f"v_lshlrev_b32 v{dst}, 16, v{src}\nv_and_b32 v{dst+1}, 0xffff0000, v{src}")

def allsum(v,t,a):
    for m in (1,2,4,8,16,32):
        E(f"v_xor_b32 v{a}, {m*4}, v63\nds_bpermute_b32 v{t}, v{a}, v{v}\ns_waitcnt lgkmcnt(0)\nv_add_f32 v{v}, v{v}, v{t}")
def ln(x):
    E(f"v_add_f32 v20, v{x}, v{x+1}")
    for i in range(2,8): E(f"v_add_f32 v20, v20, v{x+i}")
    allsum(20,21,22)
    E("v_mul_f32 v20, 0x3b000000, v20")
    E("v_mov_b32 v23, 0")
    for i in range(8): E(f"v_sub_f32 v24, v{x+i}, v20\nv_fmac_f32 v23, v24, v24")
    allsum(23,21,22)
    E("v_mul_f32 v23, 0x3b000000, v23"); rnd(23); rnd(20)
    E("v_add_f32 v23, 0x3727c5ac, v23"); rnd(23)
    E("v_sqrt_f32 v23, v23\ns_nop 0"); rnd(23)
    E("v_rcp_f32 v23, v23\ns_nop 0")
    for i in range(8):
        E(f"v_sub_f32 v{x+i}, v{x+i}, v20"); rnd(x+i)
        E(f"v_mul_f32 v{x+i}, v{x+i}, v23"); rnd(x+i)
def prep():
    n="prep_kernel"; kstart(n)
    srd(8,14,WSZ)
    E("v_and_b32 v1, 63, v0\nv_lshrrev_b32 v2, 6, v0\ns_nop 0\nv_readfirstlane_b32 s3, v2\ns_lshl_b32 s4, s2, 2\ns_add_u32 s4, s4, s3")
    E("s_cmpk_lt_u32 s4, 2048\ns_cbranch_scc0 Lp1")
    srd(12,0,2097152)
    E("s_lshl_b32 s5, s4, 10\nv_lshlrev_b32 v3, 4, v1\nv_lshlrev_b32 v63, 2, v1\nbuffer_load_dwordx4 v[4:7], v3, s[12:15], s5 offen\ns_waitcnt vmcnt(0)")
    for i in range(4): unpk(10+2*i,4+i)
    ln(10)
    for i in range(4): E(f"v_cvt_pk_bf16_f32 v{4+i}, v{10+2*i}, v{11+2*i}")
    E("buffer_store_dwordx4 v[4:7], v3, s[8:11], s5 offen")
    ln(10)
    E("s_nop 1")
    for i in range(4): E(f"v_cvt_pk_bf16_f32 v{4+i}, v{10+2*i}, v{11+2*i}")
    E(f"s_add_u32 s5, s5, {Y}\nbuffer_store_dwordx4 v[4:7], v3, s[8:11], s5 offen\ns_endpgm")
    E("Lp1:\ns_sub_u32 s4, s4, 2048")
    E("s_cmpk_lt_u32 s4, 1040\ns_cbranch_scc0 Lp2")
    E(f"s_lshl_b32 s5, s4, 10\ns_add_u32 s5, s5, {MB1}\nv_lshlrev_b32 v3, 4, v1\nv_mov_b32 v4, 0\nv_mov_b32 v5, 0\nv_mov_b32 v6, 0\nv_mov_b32 v7, 0\nbuffer_store_dwordx4 v[4:7], v3, s[8:11], s5 offen\ns_endpgm")
    E("Lp2:\ns_sub_u32 s4, s4, 1040")
    mats=[(2,512,4096,WQKVF),(3,512,4096,WQKVF+0x400000),(4,512,4096,WQKVF+0x800000),(5,4096,512,WOF),(8,512,1376,W1F),(10,1376,512,W2F)]
    for mi,(slot,K,N,dst) in enumerate(mats):
        KS=K//32;NB=N//32;cnt=KS*NB
        lit(6,cnt); E(f"s_cmp_lt_u32 s4, s6\ns_cbranch_scc0 Lm{mi}")
        srd(12,slot,K*N*2)
        if KS in (16,128):
            sh=KS.bit_length()-1
            E(f"s_lshr_b32 s7, s4, {sh}\ns_and_b32 s5, s4, {KS-1}")
        else:
            lit(6,(2**32+KS-1)//KS); E(f"s_mul_hi_u32 s7, s4, s6\ns_mul_i32 s5, s7, {KS}\ns_sub_u32 s5, s4, s5")
        E(f"v_lshrrev_b32 v2, 4, v1\nv_and_b32 v3, 15, v1\nv_mul_u32_u24 v4, {8*N*2}, v2\nv_lshl_add_u32 v4, v3, 2, v4")
        E(f"s_mul_i32 s16, s5, {32*N*2}\ns_lshl_b32 s17, s7, 6\ns_add_u32 s16, s16, s17")
        for i in range(8): E(f"buffer_load_dword v{10+i}, v4, s[12:15], s16 offen offset:0\ns_add_u32 s16, s16, {N*2}")
        E("s_waitcnt vmcnt(0)"); lit(18,0x05040100); lit(19,0x07060302)
        for i in range(4):
            E(f"v_perm_b32 v{20+i}, v{11+2*i}, v{10+2*i}, s18\nv_perm_b32 v{24+i}, v{11+2*i}, v{10+2*i}, s19")
        E(f"v_lshrrev_b32 v5, 3, v3\nv_mul_u32_u24 v5, {KS*1024}, v5\nv_lshlrev_b32 v6, 8, v2\nv_add_u32 v5, v5, v6\nv_and_b32 v6, 7, v3\nv_lshl_add_u32 v5, v6, 5, v5")
        E(f"s_mul_i32 s16, s7, {2*KS*1024}\ns_lshl_b32 s17, s5, 10\ns_add_u32 s16, s16, s17\ns_add_u32 s16, s16, {dst}")
        E("buffer_store_dwordx4 v[20:23], v5, s[8:11], s16 offen\nbuffer_store_dwordx4 v[24:27], v5, s[8:11], s16 offen offset:16\ns_endpgm")
        E(f"Lm{mi}:\ns_sub_u32 s4, s4, {cnt}")
    kend(n,64,64)
    return 2048+1040+sum((K//32)*(N//32) for _,K,N,_ in mats)

def gemm_body(tag,Aoff,lda,K,WF,swap,epi):
    KS=K//32
    for mt in range(4):
        E(f"v_add_u32 v{100+mt}, {Aoff+mt*16*lda}, v98")
    for nt in range(4):
        E(f"s_add_u32 s22, s21, {nt}\ns_mul_i32 s22, s22, {KS*1024}\ns_add_u32 s22, s22, {WF}\nv_add_u32 v{104+nt}, s22, v99")
    for i in range(64): E(f"v_mov_b32 v{i}, 0")
    def load(buf,sa,sb):
        for mt in range(4): E(f"buffer_load_dwordx4 v[{108+buf*32+mt*4}:{111+buf*32+mt*4}], v{100+mt}, s[8:11], s{sa} offen")
        for nt in range(4): E(f"buffer_load_dwordx4 v[{124+buf*32+nt*4}:{127+buf*32+nt*4}], v{104+nt}, s[8:11], s{sb} offen")
        E(f"s_add_u32 s{sa}, s{sa}, 64\ns_add_u32 s{sb}, s{sb}, 1024")
    def mm(buf):
        for mt in range(4):
            for nt in range(4):
                a=f"v[{108+buf*32+mt*4}:{111+buf*32+mt*4}]"; b=f"v[{124+buf*32+nt*4}:{127+buf*32+nt*4}]"
                if swap: a,b=b,a
                c=(mt*4+nt)*4
                E(f"v_mfma_f32_16x16x32_bf16 v[{c}:{c+3}], {a}, {b}, v[{c}:{c+3}]")
    lit(24,0); lit(25,0); lit(26,KS//2)
    load(0,24,25)
    E(f"L{tag}:")
    load(1,24,25); E("s_waitcnt vmcnt(8)"); mm(0)
    load(0,24,25); E("s_waitcnt vmcnt(8)"); mm(1)
    E(f"s_sub_u32 s26, s26, 1\ns_cmp_lg_u32 s26, 0\ns_cbranch_scc1 L{tag}")
    E("s_waitcnt vmcnt(0)")
    if KS%2: mm(0)
    E("s_nop 15")
    epi()
def gemm_head(n,lda,nNB):
    kstart(n); srd(8,14,WSZ)
    lit(4,16*nNB); E("s_cmp_ge_u32 s2, s4\ns_cbranch_scc1 Lend_"+n)
    E("s_and_b32 s5, s2, 15\ns_lshr_b32 s6, s2, 4")
    E("v_lshrrev_b32 v2, 6, v0\ns_nop 0\nv_readfirstlane_b32 s3, v2\nv_and_b32 v1, 63, v0")
    E("s_lshr_b32 s7, s3, 1\ns_lshl_b32 s7, s7, 6\ns_lshl_b32 s20, s5, 7\ns_add_u32 s20, s20, s7")
    E("s_and_b32 s7, s3, 1\ns_lshl_b32 s7, s7, 2\ns_lshl_b32 s21, s6, 3\ns_add_u32 s21, s21, s7")
    E(f"v_and_b32 v96, 15, v1\nv_lshrrev_b32 v97, 4, v1\nv_add_u32 v98, s20, v96\nv_mul_u32_u24 v98, {lda}, v98\nv_lshl_add_u32 v98, v97, 4, v98\nv_lshlrev_b32 v99, 4, v1")
def pack2(c): E(f"v_cvt_pk_bf16_f32 v{c}, v{c}, v{c+1}\nv_cvt_pk_bf16_f32 v{c+1}, v{c+2}, v{c+3}")
def epi_rowmajor(dst,ldo,fn=None,ntmax=None):
    E(f"v_add_u32 v94, s20, v96\nv_mul_u32_u24 v94, {ldo}, v94\nv_lshl_add_u32 v94, v97, 3, v94")
    for nt in range(4):
        if ntmax: E(f"s_add_u32 s22, s21, {nt}\ns_cmp_ge_u32 s22, {ntmax}\ns_cbranch_scc1 Lskip{nt}_{dst}")
        E(f"s_add_u32 s22, s21, {nt}\ns_lshl_b32 s22, s22, 5")
        if fn: fn(nt)
        E(f"s_add_u32 s23, s22, s27")
        for mt in range(4):
            c=(mt*4+nt)*4
            if not fn: pack2(c)
            E(f"buffer_store_dwordx2 v[{c}:{c+1}], v94, s[{'8:11' if dst!='out' else '12:15'}], s23 offen\ns_add_u32 s23, s23, {16*ldo}")
        if ntmax: E(f"Lskip{nt}_{dst}:")
def qkv():
    n="qkv_kernel"; gemm_head(n,1024,96)
    E("s_cmp_ge_u32 s6, 64\ns_cbranch_scc1 Lv")
    E(f"s_mov_b32 s28, {Q}\ns_cmp_ge_u32 s6, 32\ns_cselect_b32 s27, {KB-8192}, s28")
    gemm_body("qk",XN,1024,512,WQKVF,True,lambda: epi_rowmajor("qk",8192))
    E("s_endpgm\nLv:")
    def ev():
        E(f"s_sub_u32 s22, s21, 512\ns_lshl_b32 s22, s22, 10\ns_lshr_b32 s23, s20, 5\ns_lshl_b32 s23, s23, 18\ns_add_u32 s22, s22, s23\ns_add_u32 s22, s22, {VT}")
        E("v_lshlrev_b32 v94, 6, v96\nv_lshl_add_u32 v94, v97, 3, v94")
        for mt in range(4):
            for nt in range(4):
                c=(mt*4+nt)*4; pack2(c)
                E(f"buffer_store_dwordx2 v[{c}:{c+1}], v94, s[8:11], s22 offen offset:{nt*1024+(mt&1)*32+(mt>>1)*0}" if mt<2 else
                  f"v_add_u32 v95, {1<<18}, v94\nbuffer_store_dwordx2 v[{c}:{c+1}], v95, s[8:11], s22 offen offset:{nt*1024+(mt&1)*32}")
    gemm_body("vloop",XN,1024,512,WQKVF,False,ev)
    E("Lend_"+n+":"); kend(n,176,176)
def act(kind,c):
    if kind=="gelu":
        E(f"v_mul_f32 v90, v{c}, v{c}\nv_mov_b32 v91, 0x3d372713\nv_fma_f32 v90, v90, v91, 1.0\nv_mul_f32 v90, v90, v{c}\nv_mul_f32 v90, 0x40135761, v90")
        E(f"v_exp_f32 v90, v90\ns_nop 0\nv_add_f32 v90, 1.0, v90\nv_rcp_f32 v90, v90\ns_nop 0\nv_fma_f32 v90, v90, -2.0, 1.0\nv_add_f32 v90, 1.0, v90\nv_mul_f32 v90, 0.5, v90\nv_mul_f32 v{c}, v{c}, v90")
    else:
        E(f"v_mul_f32 v90, 0xbfb8aa3b, v{c}\nv_exp_f32 v90, v90\ns_nop 0\nv_add_f32 v90, 1.0, v90\nv_rcp_f32 v90, v90\ns_nop 0\nv_mul_f32 v{c}, v{c}, v90")
def mlp(n,Aoff,lda,K,WF,nNB,slot,bsz,kind,dst,ldo,ntmax):
    gemm_head(n,lda,nNB); srd(12,slot,bsz); lit(27,dst)
    def fn(nt):
        E("v_lshlrev_b32 v95, 3, v97\nbuffer_load_dwordx2 v[84:85], v95, s[12:15], s22 offen\ns_waitcnt vmcnt(0)")
        unpk(86,84); unpk(88,85)
        for mt in range(4):
            c=(mt*4+nt)*4
            for r in range(4):
                rnd(c+r); E(f"v_add_f32 v{c+r}, v{c+r}, v{86+r}"); rnd(c+r); act(kind,c+r)
            pack2(c)
    gemm_body("m"+n,Aoff,lda,K,WF,True,lambda: epi_rowmajor(n,ldo,fn,ntmax))
    E("Lend_"+n+":"); kend(n,176,176)
def wo():
    n="wo_kernel"; gemm_head(n,8192,4); srd(12,12,2097152); srd(16,0,2097152); lit(27,0)
    def fn(nt):
        for mt in range(4):
            c=(mt*4+nt)*4
            E(f"s_add_u32 s28, s22, {mt*16*1024}\ns_add_u32 s29, s28, {GB}\nbuffer_load_dwordx2 v[84:85], v94, s[16:19], s28 offen\nbuffer_load_dwordx2 v[92:93], v94, s[8:11], s29 offen\ns_waitcnt vmcnt(0)")
            unpk(86,84); unpk(88,85); unpk(80,92); unpk(82,93)
            for r in range(4):
                rnd(c+r); E(f"v_mul_f32 v{c+r}, v{c+r}, v{80+r}"); rnd(c+r); E(f"v_add_f32 v{c+r}, v{c+r}, v{86+r}")
            pack2(c)
    gemm_body("w",OB,8192,4096,WOF,True,lambda: epi_rowmajor("out",1024,fn))
    E("Lend_"+n+":"); kend(n,176,176)

def softmax(tiles,t0):
    m=t0
    regs=[c+r for c in tiles for r in range(4)]
    E(f"v_max_f32 v{m}, v{regs[0]}, v{regs[1]}")
    for r in regs[2:]: E(f"v_max_f32 v{m}, v{m}, v{r}")
    for x in (16,32):
        E(f"v_xor_b32 v{t0+1}, {x*4}, v63\nds_bpermute_b32 v{t0+2}, v{t0+1}, v{m}\ns_waitcnt lgkmcnt(0)\nv_max_f32 v{m}, v{m}, v{t0+2}")
    E(f"v_mov_b32 v{t0+3}, 0")
    for r in regs:
        E(f"v_sub_f32 v{r}, v{r}, v{m}\nv_mul_f32 v{r}, 0x3fb8aa3b, v{r}\nv_exp_f32 v{r}, v{r}\ns_nop 0\nv_add_f32 v{t0+3}, v{t0+3}, v{r}")
    for x in (16,32):
        E(f"v_xor_b32 v{t0+1}, {x*4}, v63\nds_bpermute_b32 v{t0+2}, v{t0+1}, v{t0+3}\ns_waitcnt lgkmcnt(0)\nv_add_f32 v{t0+3}, v{t0+3}, v{t0+2}")
    E(f"v_rcp_f32 v{t0+3}, v{t0+3}\ns_nop 0")
    for r in regs: E(f"v_mul_f32 v{r}, v{r}, v{t0+3}")
    for c in tiles: pack2(c)
def scale(c):
    for r in range(4):
        rnd(c+r); E(f"v_mul_f32 v{c+r}, 0x3db504f3, v{c+r}"); rnd(c+r)
def maskge(c,lim):
    for r in range(4):
        E(f"v_add_u32 v60, {r}, v61\nv_cmp_gt_u32 vcc, v60, v{lim}\ns_nop 1\nv_cndmask_b32 v{c+r}, v{c+r}, v59, vcc")

def attn():
    n="attn_kernel"; kstart(n); srd(8,14,WSZ)
    E("s_cmpk_ge_u32 s2, 512\ns_cbranch_scc1 Lend_attn")
    E("v_lshrrev_b32 v2, 6, v0\ns_nop 0\nv_readfirstlane_b32 s3, v2\nv_and_b32 v1, 63, v0\ns_lshl_b32 s4, s2, 2\ns_add_u32 s4, s4, s3\ns_lshr_b32 s5, s4, 5\ns_and_b32 s6, s4, 31")
    E("v_lshlrev_b32 v63, 2, v1\nv_and_b32 v62, 15, v1\nv_lshrrev_b32 v58, 4, v1\nv_lshlrev_b32 v61, 2, v58\nv_mov_b32 v59, 0xce6e6b28\nv_mov_b32 v57, 7")
    E("v_lshlrev_b32 v2, 13, v62\nv_lshl_add_u32 v2, v58, 4, v2\ns_lshl_b32 s7, s5, 18\ns_lshl_b32 s16, s6, 8\ns_add_u32 s7, s7, s16")
    E(f"s_add_u32 s16, s7, {Q}\ns_add_u32 s17, s7, {KB}\ns_add_u32 s18, s16, {16*8192}\ns_add_u32 s19, s17, {16*8192}")
    for ks in range(4):
        E(f"buffer_load_dwordx4 v[{64+ks*4}:{67+ks*4}], v2, s[8:11], s16 offen offset:{ks*64}")
        E(f"buffer_load_dwordx4 v[{80+ks*4}:{83+ks*4}], v2, s[8:11], s18 offen offset:{ks*64}")
        E(f"buffer_load_dwordx4 v[{96+ks*4}:{99+ks*4}], v2, s[8:11], s17 offen offset:{ks*64}")
        E(f"buffer_load_dwordx4 v[{112+ks*4}:{115+ks*4}], v2, s[8:11], s19 offen offset:{ks*64}")
    E(f"v_and_b32 v3, 7, v1\nv_lshlrev_b32 v3, 8, v3\nv_lshl_add_u32 v3, v58, 4, v3\ns_lshl_b32 s20, s4, 11\ns_add_u32 s21, s20, {KM}\ns_add_u32 s22, s20, {VMT}\ns_lshl_b32 s23, s4, 13\ns_add_u32 s23, s23, {VT}")
    for ks in range(4): E(f"buffer_load_dwordx4 v[{128+ks*4}:{131+ks*4}], v3, s[8:11], s21 offen offset:{ks*64}")
    E("v_lshlrev_b32 v4, 6, v62\nv_lshl_add_u32 v4, v58, 3, v4\nv_and_b32 v5, 1, v58\nv_lshlrev_b32 v6, 4, v62\nv_lshl_add_u32 v5, v5, 3, v6")
    for et in range(8):
        E(f"buffer_load_dwordx2 v[{144+et*6}:{145+et*6}], v4, s[8:11], s23 offen")
        E(f"buffer_load_dwordx2 v[{146+et*6}:{147+et*6}], v4, s[8:11], s23 offen offset:32\ns_add_u32 s23, s23, 1024")
        E(f"buffer_load_dwordx2 v[{148+et*6}:{149+et*6}], v5, s[8:11], s22 offen offset:{et*256}")
    for i in range(8,28): E(f"v_mov_b32 v{i}, 0")
    E("s_waitcnt vmcnt(24)")
    T={0:96,1:112,2:128}; Qf={0:64,1:80}
    tl=[(0,0,8),(2,0,12),(0,1,16),(1,1,20),(2,1,24)]
    for kt,qt,c in tl:
        for ks in range(4): E(f"v_mfma_f32_16x16x32_bf16 v[{c}:{c+3}], v[{T[kt]+ks*4}:{T[kt]+ks*4+3}], v[{Qf[qt]+ks*4}:{Qf[qt]+ks*4+3}], v[{c}:{c+3}]")
    E("s_nop 15")
    for _,_,c in tl: scale(c)
    maskge(8,62); maskge(12,57); maskge(20,62); maskge(24,57)
    softmax([8,12],28); softmax([16,20,24],28)
    E("s_waitcnt vmcnt(0)")
    E("v_lshlrev_b32 v2, 13, v62\nv_lshl_add_u32 v2, v58, 3, v2")
    E(f"s_add_u32 s16, s7, {OB}\ns_add_u32 s17, s16, {16*8192}")
    for et in range(8):
        b=144+et*6
        E("v_mov_b32 v32, 0\nv_mov_b32 v33, 0\nv_mov_b32 v34, 0\nv_mov_b32 v35, 0\nv_mov_b32 v36, 0\nv_mov_b32 v37, 0\nv_mov_b32 v38, 0\nv_mov_b32 v39, 0\ns_nop 1")
        E(f"v_mfma_f32_16x16x16_bf16 v[32:35], v[{b}:{b+1}], v[8:9], v[32:35]\nv_mfma_f32_16x16x16_bf16 v[32:35], v[{b+4}:{b+5}], v[12:13], v[32:35]")
        E(f"v_mfma_f32_16x16x16_bf16 v[36:39], v[{b}:{b+1}], v[16:17], v[36:39]\nv_mfma_f32_16x16x16_bf16 v[36:39], v[{b+2}:{b+3}], v[20:21], v[36:39]\nv_mfma_f32_16x16x16_bf16 v[36:39], v[{b+4}:{b+5}], v[24:25], v[36:39]\ns_nop 15")
        pack2(32); pack2(36)
        E(f"buffer_store_dwordx2 v[32:33], v2, s[8:11], s16 offen offset:{et*32}\nbuffer_store_dwordx2 v[36:37], v2, s[8:11], s17 offen offset:{et*32}\ns_nop 1")
    E("Lend_attn:"); kend(n,200,200)

LMEM=0;LQ=LMEM+8320;LK=LQ+2176;LO=LK+2176;LKT=LO+2176;LVT=LKT+8704;LRED=LQ;LWO=LVT+9216;LDSZ=LWO+131072
def chain():
    n="chain_kernel"; kstart(n); srd(8,14,WSZ)
    E("s_cmp_ge_u32 s2, 32\ns_cbranch_scc1 Lend_chain")
    E("v_lshrrev_b32 v2, 6, v0\ns_nop 0\nv_readfirstlane_b32 s3, v2\nv_and_b32 v1, 63, v0")
    E("v_lshlrev_b32 v63, 2, v1\nv_and_b32 v62, 15, v1\nv_lshrrev_b32 v58, 4, v1\nv_lshlrev_b32 v61, 2, v58\nv_mov_b32 v59, 0xce6e6b28\nv_mov_b32 v57, 7\nv_lshlrev_b32 v56, 4, v1")
    for j in range(6):
        E(f"s_lshl_b32 s4, s2, 3\ns_lshl_b32 s5, s3, 1\ns_add_u32 s4, s4, s5\ns_add_u32 s4, s4, {(j>>1)*256+(j&1)}\ns_lshl_b32 s4, s4, 14\ns_add_u32 s4, s4, {WQKVF}")
        for ks in range(16):
            r=j*64+ks*4
            reg=f"a[{r}:{r+3}]" if r<256 else f"v[{r-128}:{r-125}]"
            E(f"buffer_load_dwordx4 {reg}, v56, s[8:11], s4 offen offset:{ks*1024 if ks<4 else 0}" if ks<4 else f"s_add_u32 s6, s4, {ks*1024}\nbuffer_load_dwordx4 {reg}, v56, s[8:11], s6 offen")
        E("s_waitcnt vmcnt(0)")
    for t in range(8):
        E(f"s_lshl_b32 s4, s3, 3\ns_add_u32 s4, s4, {t}\ns_lshl_b32 s5, s4, 17\ns_lshl_b32 s6, s2, 12\ns_add_u32 s5, s5, s6\ns_add_u32 s5, s5, {WOF}\ns_lshl_b32 s4, s4, 12\ns_add_u32 s4, s4, {LWO}\nv_add_u32 v2, s4, v56")
        for k in range(4): E(f"buffer_load_dwordx4 v[{4+4*k}:{7+4*k}], v56, s[8:11], s5 offen offset:{k*1024}")
        E("s_waitcnt vmcnt(0)")
        for k in range(4): E(f"ds_write_b128 v2, v[{4+4*k}:{7+4*k}] offset:{k*1024}")
    srd(12,1,8192)
    E(f"v_lshlrev_b32 v2, 5, v0\nbuffer_load_dwordx4 v[4:7], v2, s[12:15], 0 offen\nbuffer_load_dwordx4 v[8:11], v2, s[12:15], 0 offen offset:16\nv_lshrrev_b32 v3, 5, v0\nv_mul_u32_u24 v3, 1040, v3\nv_and_b32 v2, 31, v0\nv_lshl_add_u32 v3, v2, 5, v3\ns_waitcnt vmcnt(0)\nds_write_b128 v3, v[4:7] offset:{LMEM}\nds_write_b128 v3, v[8:11] offset:{LMEM+16}")
    lit(30,0)
    E("Lstep:")
    E(f"v_lshrrev_b32 v2, 3, v0\nv_and_b32 v3, 7, v0\nv_lshlrev_b32 v4, 13, v2\nv_lshl_add_u32 v4, v3, 5, v4\ns_lshl_b32 s4, s30, 18\ns_lshl_b32 s5, s2, 8\ns_add_u32 s4, s4, s5\ns_add_u32 s4, s4, {KB}")
    E(f"s_lshl_b32 s5, s30, 5\ns_add_u32 s5, s5, s2\ns_lshl_b32 s5, s5, 13\ns_add_u32 s5, s5, {VT}\nv_lshlrev_b32 v5, 5, v0")
    E("buffer_load_dwordx4 v[8:11], v4, s[8:11], s4 offen\nbuffer_load_dwordx4 v[12:15], v4, s[8:11], s4 offen offset:16\nbuffer_load_dwordx4 v[16:19], v5, s[8:11], s5 offen\nbuffer_load_dwordx4 v[20:23], v5, s[8:11], s5 offen offset:16")
    E("v_mul_u32_u24 v6, 272, v2\nv_lshl_add_u32 v6, v3, 5, v6\nv_lshrrev_b32 v2, 1, v0\nv_mul_u32_u24 v7, 72, v2\nv_and_b32 v3, 1, v0\nv_lshl_add_u32 v7, v3, 5, v7\ns_waitcnt vmcnt(0)")
    E(f"ds_write_b128 v6, v[8:11] offset:{LKT}\nds_write_b128 v6, v[12:15] offset:{LKT+16}\nds_write_b64 v7, v[16:17] offset:{LVT}\nds_write_b64 v7, v[18:19] offset:{LVT+8}\nds_write_b64 v7, v[20:21] offset:{LVT+16}\nds_write_b64 v7, v[22:23] offset:{LVT+24}")
    E("s_cmp_eq_u32 s30, 0\ns_cbranch_scc1 Lnopoll")
    E(f"v_lshlrev_b32 v2, 4, v0\nLpoll2:")
    for i in range(4): E(f"s_mov_b32 s4, {MB2+i*4096}\nbuffer_load_dwordx4 v[{4+4*i}:{7+4*i}], v2, s[8:11], s4 offen sc1")
    E("s_waitcnt vmcnt(0)\nv_xor_b32 v3, s30, v5")
    for r in (7,9,11,13,15,17,19): E(f"v_xor_b32 v24, s30, v{r}\nv_or_b32 v3, v3, v24")
    E("v_cmp_ne_u32 vcc, 0, v3\ns_cbranch_vccnz Lpoll2")
    E("v_bfe_u32 v3, v0, 2, 3\nv_mul_u32_u24 v3, 1040, v3\nv_lshrrev_b32 v24, 5, v0\nv_lshl_add_u32 v3, v24, 5, v3\nv_and_b32 v24, 3, v0\nv_lshl_add_u32 v3, v24, 3, v3")
    for i in range(4): E(f"v_mov_b32 v{5+4*i}, v{6+4*i}\nds_write_b64 v3, v[{4+4*i}:{5+4*i}] offset:{LMEM+i*256}")
    E("Lnopoll:\ns_waitcnt lgkmcnt(0)\ns_barrier")
    E("v_and_b32 v2, 7, v1\nv_mul_u32_u24 v2, 1040, v2\nv_lshl_add_u32 v2, v58, 4, v2")
    for ks in range(16): E(f"ds_read_b128 v[{64+ks*4}:{67+ks*4}], v2 offset:{LMEM+ks*64}")
    for i in range(24): E(f"v_mov_b32 v{8+i}, 0")
    E("s_waitcnt lgkmcnt(0)")
    for ks in range(16):
        for j in range(6):
            r=j*64+ks*4; w=f"a[{r}:{r+3}]" if r<256 else f"v[{r-128}:{r-125}]"; m=f"v[{64+ks*4}:{67+ks*4}]"
            a,b=(w,m) if j<4 else (m,w)
            E(f"v_mfma_f32_16x16x32_bf16 v[{8+j*4}:{11+j*4}], {a}, {b}, v[{8+j*4}:{11+j*4}]")
    E("s_nop 15")
    for j in range(6): pack2(8+j*4)
    E(f"v_mul_u32_u24 v2, 272, v62\nv_lshl_add_u32 v2, v58, 3, v2\ns_lshl_b32 s4, s3, 6\nv_add_u32 v2, s4, v2\nv_cmp_gt_u32 vcc, 8, v62\ns_and_saveexec_b64 s[32:33], vcc")
    E(f"ds_write_b64 v2, v[8:9] offset:{LQ}\nds_write_b64 v2, v[12:13] offset:{LQ+32}\nds_write_b64 v2, v[16:17] offset:{LK}\nds_write_b64 v2, v[20:21] offset:{LK+32}")
    E(f"s_lshl_b32 s5, s30, 5\ns_add_u32 s5, s5, s2\ns_lshl_b32 s5, s5, 11\ns_add_u32 s6, s5, {KM}\ns_add_u32 s6, s6, s4\nv_lshlrev_b32 v3, 8, v62\nv_lshl_add_u32 v3, v58, 3, v3\nbuffer_store_dwordx2 v[16:17], v3, s[8:11], s6 offen\nbuffer_store_dwordx2 v[20:21], v3, s[8:11], s6 offen offset:32\ns_mov_b64 exec, s[32:33]")
    E(f"s_lshl_b32 s4, s3, 9\ns_add_u32 s6, s5, {VMT}\ns_add_u32 s6, s6, s4\nv_lshlrev_b32 v3, 4, v62\nv_lshl_add_u32 v3, v58, 3, v3\nv_cmp_gt_u32 vcc, 2, v58\ns_and_saveexec_b64 s[32:33], vcc\nbuffer_store_dwordx2 v[24:25], v3, s[8:11], s6 offen\nbuffer_store_dwordx2 v[28:29], v3, s[8:11], s6 offen offset:256\ns_mov_b64 exec, s[32:33]")
    E("s_waitcnt lgkmcnt(0)\ns_barrier")
    E("v_and_b32 v2, 7, v1\nv_mul_u32_u24 v2, 272, v2\nv_lshl_add_u32 v2, v58, 4, v2\nv_mul_u32_u24 v3, 272, v62\nv_lshl_add_u32 v3, v58, 4, v3")
    for ks in range(4):
        E(f"ds_read_b128 v[{64+ks*4}:{67+ks*4}], v2 offset:{LQ+ks*64}\nds_read_b128 v[{80+ks*4}:{83+ks*4}], v2 offset:{LK+ks*64}\nds_read_b128 v[{96+ks*4}:{99+ks*4}], v3 offset:{LKT+ks*64}\nds_read_b128 v[{112+ks*4}:{115+ks*4}], v3 offset:{LKT+16*272+ks*64}")
    E("s_lshl_b32 s4, s3, 5\nv_add_u32 v4, s4, v62\nv_mul_u32_u24 v4, 72, v4\nv_lshl_add_u32 v4, v58, 3, v4")
    E(f"ds_read_b64 v[32:33], v4 offset:{LVT}\nds_read_b64 v[34:35], v4 offset:{LVT+32}\nds_read_b64 v[36:37], v4 offset:{LVT+16*72}\nds_read_b64 v[38:39], v4 offset:{LVT+16*72+32}")
    for i in range(12): E(f"v_mov_b32 v{8+i}, 0")
    E("s_waitcnt lgkmcnt(0)")
    for kt,c in ((96,8),(112,12),(80,16)):
        for ks in range(4): E(f"v_mfma_f32_16x16x32_bf16 v[{c}:{c+3}], v[{kt+ks*4}:{kt+ks*4+3}], v[{64+ks*4}:{67+ks*4}], v[{c}:{c+3}]")
    E("s_nop 15")
    for c in (8,12,16): scale(c)
    maskge(16,57); softmax([8,12,16],40)
    for i in range(8): E(f"v_mov_b32 v{48+i}, 0")
    E("s_nop 1")
    for e,(c,vm) in enumerate(((48,24),(52,28))):
        E(f"v_mfma_f32_16x16x16_bf16 v[{c}:{c+3}], v[{32+e*4}:{33+e*4}], v[8:9], v[{c}:{c+3}]\nv_mfma_f32_16x16x16_bf16 v[{c}:{c+3}], v[{34+e*4}:{35+e*4}], v[12:13], v[{c}:{c+3}]\nv_mfma_f32_16x16x16_bf16 v[{c}:{c+3}], v[{vm}:{vm+1}], v[16:17], v[{c}:{c+3}]")
    E("s_nop 15"); pack2(48); pack2(52)
    E(f"v_mul_u32_u24 v2, 272, v62\nv_lshl_add_u32 v2, v58, 3, v2\ns_lshl_b32 s4, s3, 6\nv_add_u32 v2, s4, v2\nv_cmp_gt_u32 vcc, 8, v62\ns_and_saveexec_b64 s[32:33], vcc\nds_write_b64 v2, v[48:49] offset:{LO}\nds_write_b64 v2, v[52:53] offset:{LO+32}\ns_mov_b64 exec, s[32:33]\ns_waitcnt lgkmcnt(0)\ns_barrier")
    E(f"v_and_b32 v2, 7, v1\nv_mul_u32_u24 v2, 272, v2\nv_lshl_add_u32 v2, v58, 4, v2\ns_lshl_b32 s4, s3, 15\ns_add_u32 s4, s4, {LWO}\nv_add_u32 v3, s4, v56")
    for ks in range(4): E(f"ds_read_b128 v[{64+ks*4}:{67+ks*4}], v2 offset:{LO+ks*64}")
    E(f"v_lshlrev_b32 v4, 7, v62\nv_lshl_add_u32 v4, v58, 5, v4\ns_lshl_b32 s5, s2, 10\ns_lshl_b32 s6, s3, 18\ns_add_u32 s5, s5, s6\ns_add_u32 s5, s5, {MB1}\ns_add_u32 s31, s30, 1\nv_cmp_gt_u32 vcc, 8, v62")
    for t in range(8):
        for k in range(4): E(f"ds_read_b128 v[{80+k*4}:{83+k*4}], v3 offset:{t*4096+k*1024}")
        E("v_mov_b32 v8, 0\nv_mov_b32 v9, 0\nv_mov_b32 v10, 0\nv_mov_b32 v11, 0\ns_waitcnt lgkmcnt(0)")
        for k in range(4): E(f"v_mfma_f32_16x16x32_bf16 v[8:11], v[{80+k*4}:{83+k*4}], v[{64+k*4}:{67+k*4}], v[8:11]")
        E("s_nop 15\nv_mov_b32 v12, v8\nv_mov_b32 v13, s31\nv_mov_b32 v14, v9\nv_mov_b32 v15, s31\nv_mov_b32 v16, v10\nv_mov_b32 v17, s31\nv_mov_b32 v18, v11\nv_mov_b32 v19, s31\ns_and_saveexec_b64 s[32:33], vcc")
        E(f"buffer_store_dwordx4 v[12:15], v4, s[8:11], s5 offen sc1\nbuffer_store_dwordx4 v[16:19], v4, s[8:11], s5 offen offset:16 sc1\ns_mov_b64 exec, s[32:33]\ns_add_u32 s5, s5, 32768\ns_nop 1")
    E("s_cmp_eq_u32 s30, 63\ns_cbranch_scc1 Lend_chain")
    E(f"s_lshl_b32 s5, s2, 15\ns_lshl_b32 s6, s3, 13\ns_add_u32 s5, s5, s6\ns_add_u32 s5, s5, {MB1}\nLpoll1:")
    for p in range(8): E(f"buffer_load_dwordx4 v[{8+4*p}:{11+4*p}], v56, s[8:11], s5 offen offset:{p*1024 if p<4 else 0} sc1" if p<4 else f"s_add_u32 s6, s5, {p*1024}\nbuffer_load_dwordx4 v[{8+4*p}:{11+4*p}], v56, s[8:11], s6 offen sc1")
    E("s_waitcnt vmcnt(0)\nv_xor_b32 v3, s31, v9")
    for r in range(11,40,2): E(f"v_xor_b32 v2, s31, v{r}\nv_or_b32 v3, v3, v2")
    E("v_cmp_ne_u32 vcc, 0, v3\ns_cbranch_vccnz Lpoll1")
    for p in range(1,8): E(f"v_add_f32 v8, v8, v{8+4*p}\nv_add_f32 v10, v10, v{10+4*p}")
    E(f"v_mov_b32 v9, v10\nv_lshlrev_b32 v2, 3, v0\nds_write_b64 v2, v[8:9] offset:{LRED}\ns_waitcnt lgkmcnt(0)\ns_barrier\ns_cmp_lg_u32 s3, 0\ns_cbranch_scc1 Lnopub")
    E(f"ds_read_b64 v[10:11], v2 offset:{LRED+512}\nds_read_b64 v[12:13], v2 offset:{LRED+1024}\nds_read_b64 v[14:15], v2 offset:{LRED+1536}\ns_waitcnt lgkmcnt(0)")
    E(f"v_add_f32 v8, v8, v10\nv_add_f32 v9, v9, v11\nv_add_f32 v8, v8, v12\nv_add_f32 v9, v9, v13\nv_add_f32 v8, v8, v14\nv_add_f32 v9, v9, v15\nv_cvt_pk_bf16_f32 v8, v8, v9\nv_mov_b32 v9, s31\ns_lshl_b32 s5, s2, 9\ns_add_u32 s5, s5, {MB2}\nbuffer_store_dwordx2 v[8:9], v2, s[8:11], s5 offen sc1")
    E("Lnopub:\ns_add_u32 s30, s30, 1\ns_branch Lstep\nLend_chain:"); kend(n,512,256)

nw=prep(); qkv()
mlp("mlp1_kernel",Y,1024,512,W1F,11,9,2752,"gelu",HB,2752,86)
mlp("mlp2_kernel",HB,2752,1376,W2F,4,11,1024,"silu",GB,1024,None)
chain(); attn(); wo()
hdr=open(f"cdna_kernels/{NAME}.s.ref").read().split("; Override")[0]
L=[("prep_kernel",(nw+3)//4,0),("qkv_kernel",1536,0),("mlp1_kernel",176,0),("mlp2_kernel",64,0),("chain_kernel",32,LDSZ),("attn_kernel",512,0),("wo_kernel",64,0)]
for k,g,l in L: hdr+=f"; @launch kernel={k} grid=({g},1,1) block=(256,1,1) lds={l}\n"
s=hdr+'.amdgcn_target "amdgcn-amd-amdhsa--gfx950"\n.text\n'+"\n".join(out)+'\n.section .rodata,"a"\n'
for n,vg,acc in kernels:
    s+=f".p2align 6\n.amdhsa_kernel {n}\n  .amdhsa_next_free_vgpr {vg}\n  .amdhsa_next_free_sgpr 102\n  .amdhsa_accum_offset {acc}\n  .amdhsa_group_segment_fixed_size 0\n  .amdhsa_kernarg_size 120\n  .amdhsa_user_sgpr_count 2\n  .amdhsa_user_sgpr_kernarg_segment_ptr 1\n  .amdhsa_system_sgpr_workgroup_id_x 1\n.end_amdhsa_kernel\n"
open(f"cdna_kernels/{NAME}.s","w").write(s)
```
